```python
import torch

def _softmax(x, axis=-1):
    return torch.softmax(x, dim=axis)
def _gelu(x):
    return torch.nn.functional.gelu(x, approximate="tanh")
def _silu(x):
    return torch.nn.functional.silu(x)
def _sigmoid(x):
    return torch.sigmoid(x)
def _layernorm(x, axis=-1, eps=1e-5):
    m = x.mean(dim=axis, keepdim=True)
    v = x.var(dim=axis, keepdim=True, unbiased=False)
    return (x - m) / torch.sqrt(v + eps)
def _scatter_add(tgt, idx, src, axis=0):
    return tgt.clone().index_add_(axis, idx, src)
def _segment_sum(src, seg, n):
    out = torch.zeros((n,) + src.shape[1:], dtype=src.dtype)
    return out.index_add_(0, seg, src)
def _pad(x, pw):
    flat = tuple(v for pair in reversed(pw) for v in pair)
    return torch.nn.functional.pad(x, flat)

kernel_name = 'interleave_layers__mha_block__dense_activation_relu__prompt'

def setup_inputs():

    _w = (lambda a: (lambda t: t.to(torch.bfloat16) if t.is_floating_point() else t)(torch.as_tensor(a)))
    def _A_setup():
        B, S, D, H = 1, 2048, 512, 32
        return {
            "x": _w((lambda *s: torch.randn(*s, dtype=torch.bfloat16) * 0.05)(B, S, D)),
            "wqkv": _w((lambda *s: torch.randn(*s, dtype=torch.bfloat16) * 0.05)(D, 3 * D)),
            "wo": _w((lambda *s: torch.randn(*s, dtype=torch.bfloat16) * 0.05)(D, D)),
        }
    _A_in = _A_setup()

    def _B_setup():
        B, S, D, Dff = 1, 2048, 512, 1792
        return {
            "x": _w((lambda *s: torch.randn(*s, dtype=torch.bfloat16) * 0.05)(B, S, D)),
            "w1": _w((lambda *s: torch.randn(*s, dtype=torch.bfloat16) * 0.05)(D, Dff)),
            "w2": _w((lambda *s: torch.randn(*s, dtype=torch.bfloat16) * 0.05)(Dff, D)),
        }
    _B_in = _B_setup()

    return {
        "A_x": _A_in["x"],
        "A_wqkv": _A_in["wqkv"],
        "A_wo": _A_in["wo"],
        "B_x": _B_in["x"],
        "B_w1": _B_in["w1"],
        "B_w2": _B_in["w2"],
    }

def reference(A_x, A_wqkv, A_wo, B_x, B_w1, B_w2):
    def _A_ref(x, wqkv, wo):
        B, S, D = x.shape
        H = 32
        Dh = D // H
        qkv = (lambda x, *d: x.permute(*d))((x @ wqkv).reshape(B, S, 3, H, Dh), 2, 0, 3, 1, 4)
        q, k, v = qkv[0], qkv[1], qkv[2]
        scores = torch.einsum("bhqd,bhkd->bhqk", q, k) * (Dh ** -0.5)
        p = _softmax(scores, axis=-1)
        o = torch.einsum("bhqk,bhkd->bhqd", p, v)
        return (lambda x, *d: x.permute(*d))(o, 0, 2, 1, 3).reshape(B, S, D) @ wo

    def _B_ref(x, w1, w2):
        h = torch.einsum("bsd,df->bsf", x, w1)
        zero = torch.zeros_like(h)
        h = torch.maximum(h, zero)
        return torch.einsum("bsf,fd->bsd", h, w2)

    x = A_x
    x = x + _A_ref(_layernorm(x, axis=-1), A_wqkv, A_wo)
    x = x + _B_ref(_layernorm(x, axis=-1), B_w1, B_w2)
    x = x + _A_ref(_layernorm(x, axis=-1), A_wqkv, A_wo)
    x = x + _B_ref(_layernorm(x, axis=-1), B_w1, B_w2)
    return x
```

```python
class Asm:
    def __init__(self):
        self.lines = []
        self._uid = 0

    def __call__(self, s, *a):
        self.lines.append("  " + s)

    def raw(self, s):
        self.lines.append(s)

    def label(self, l):
        self.lines.append(l + ":")

    def comment(self, s):
        self.lines.append("  ; " + s)

    def uid(self, p="L"):
        self._uid += 1
        return f"{p}_{self._uid}"

    def text(self):
        return "\n".join(self.lines) + "\n"


def vr(b, n=1):
    return f"v{b}" if n == 1 else f"v[{b}:{b+n-1}]"

def ar(b, n=1):
    return f"a{b}" if n == 1 else f"a[{b}:{b+n-1}]"

def sr(b, n=1):
    return f"s{b}" if n == 1 else f"s[{b}:{b+n-1}]"


def kernel_header(A, name):
    A.raw(f".globl {name}")
    A.raw(".p2align 8")
    A.raw(f".type {name},@function")
    A.label(name)


def kernel_desc(name, vgpr, agpr=0, sgpr=96):
    accum = max(4, (vgpr + 3) // 4 * 4)
    nfv = accum + agpr if agpr else vgpr
    return f""".amdhsa_kernel {name}
  .amdhsa_next_free_vgpr {nfv}
  .amdhsa_next_free_sgpr {sgpr}
  .amdhsa_accum_offset {accum}
  .amdhsa_group_segment_fixed_size 0
  .amdhsa_kernarg_size 72
  .amdhsa_user_sgpr_count 2
  .amdhsa_user_sgpr_kernarg_segment_ptr 1
  .amdhsa_system_sgpr_workgroup_id_x 1
.end_amdhsa_kernel
"""


def make_srd(A, dst, base, nbytes):
    A(f"s_mov_b32 s{dst}, s{base}")
    A(f"s_and_b32 s{dst+1}, s{base+1}, 0xffff")
    A(f"s_mov_b32 s{dst+2}, {nbytes:#x}")
    A(f"s_mov_b32 s{dst+3}, 0x20000")
```

```python
import sys
from asmlib import *

NAME = "interleave_layers__mha_block__dense_activation_relu__prompt"
MB = 1 << 20
XF = [0 * MB, 2 * MB, 4 * MB, 6 * MB]
QF, KF, VF, OF, HF = 8 * MB, 10 * MB, 12 * MB, 14 * MB, 16 * MB
WQKVF, WOF, W1F, W2F = 24 * MB, 26 * MB, 27 * MB, 29 * MB
CSQKV, CSW1 = 31 * MB, 31 * MB + 8192
ST = [32 * MB + i * 262144 for i in range(4)]
WS_BYTES = 268435456
OUT_BYTES = 2048 * 512 * 2
QSCALE = 0.25 * 1.4426950408889634
ONES = 0x3F803F80


def f32hex(x):
    import struct
    return "0x%08x" % struct.unpack("<I", struct.pack("<f", x))[0]


def lane_setup(A, vlane, vwave_s, vn32=None, vhh=None, vl16=None):
    A(f"v_lshrrev_b32 v{vlane}, 6, v0")
    A("s_nop 0")
    A(f"v_readfirstlane_b32 s{vwave_s}, v{vlane}")
    A(f"v_and_b32 v{vlane}, 63, v0")
    if vn32 is not None:
        A(f"v_and_b32 v{vn32}, 31, v{vlane}")
    if vhh is not None:
        A(f"v_lshrrev_b32 v{vhh}, 5, v{vlane}")
    if vl16 is not None:
        A(f"v_lshlrev_b32 v{vl16}, 4, v{vlane}")


def cross_half_add(A, v, tmp):
    A(f"v_mov_b32 v{tmp}, v{v}")
    A("s_nop 1")
    A(f"v_permlane32_swap_b32 v{v}, v{tmp}")
    A("s_nop 1")
    A(f"v_add_f32 v{v}, v{v}, v{tmp}")


def gen_prep(A):
    kernel_header(A, "prep_kernel")
    A("s_cmp_ge_u32 s2, 240")
    A("s_cbranch_scc1 prep_end")
    A("s_load_dwordx2 s[16:17], s[0:1], 64")
    A("s_load_dwordx4 s[20:23], s[0:1], 0")
    A("s_load_dwordx2 s[24:25], s[0:1], 16")
    A("s_load_dwordx4 s[28:31], s[0:1], 32")
    lane_setup(A, 1, 3, vn32=3, vhh=4, vl16=5)
    A("s_waitcnt lgkmcnt(0)")
    make_srd(A, 4, 16, WS_BYTES)
    A("s_lshl_b32 s35, s3, 3")
    A("s_mov_b32 s37, 0")
    A("s_cmp_lt_u32 s2, 48")
    A("s_cbranch_scc1 prep_wqkv")
    A("s_cmp_lt_u32 s2, 104")
    A("s_cbranch_scc1 prep_w1")
    A("s_cmp_lt_u32 s2, 120")
    A("s_cbranch_scc1 prep_wo")
    A("s_cmp_lt_u32 s2, 176")
    A("s_cbranch_scc1 prep_w2")
    A("s_branch prep_x")

    A.label("prep_wqkv")
    make_srd(A, 8, 22, 512 * 1536 * 2)
    A("s_mov_b32 s33, 3072")
    A("s_mov_b32 s34, s2")
    A("s_lshl_b32 s36, s34, 5")
    A("s_add_u32 s36, s36, s35")
    A("s_lshl_b32 s36, s36, 10")
    A(f"s_add_u32 s36, s36, {WQKVF:#x}")
    A("s_lshl_b32 s37, s34, 7")
    A(f"s_add_u32 s37, s37, {CSQKV:#x}")
    A("s_branch prep_w")

    A.label("prep_w1")
    make_srd(A, 8, 28, 512 * 1792 * 2)
    A("s_mov_b32 s33, 3584")
    A("s_sub_u32 s34, s2, 48")
    A("s_lshl_b32 s36, s34, 5")
    A("s_add_u32 s36, s36, s35")
    A("s_lshl_b32 s36, s36, 10")
    A(f"s_add_u32 s36, s36, {W1F:#x}")
    A("s_lshl_b32 s37, s34, 7")
    A(f"s_add_u32 s37, s37, {CSW1:#x}")
    A("s_branch prep_w")

    A.label("prep_wo")
    make_srd(A, 8, 24, 512 * 512 * 2)
    A("s_mov_b32 s33, 1024")
    A("s_sub_u32 s34, s2, 104")
    A("s_lshl_b32 s36, s34, 5")
    A("s_add_u32 s36, s36, s35")
    A("s_lshl_b32 s36, s36, 10")
    A(f"s_add_u32 s36, s36, {WOF:#x}")
    A("s_branch prep_w")

    A.label("prep_w2")
    make_srd(A, 8, 30, 1792 * 512 * 2)
    A("s_mov_b32 s33, 1024")
    A("s_sub_u32 s38, s2, 120")
    A("s_lshl_b32 s38, s38, 2")
    A("s_add_u32 s38, s38, s3")
    A("s_mul_i32 s34, s38, 4682")
    A("s_lshr_b32 s34, s34, 16")
    A("s_mul_i32 s39, s34, 14")
    A("s_sub_u32 s35, s38, s39")
    A("s_lshl_b32 s35, s35, 3")
    A("s_mul_i32 s36, s34, 112")
    A("s_add_u32 s36, s36, s35")
    A("s_lshl_b32 s36, s36, 10")
    A(f"s_add_u32 s36, s36, {W2F:#x}")

    A.label("prep_w")
    A("v_lshlrev_b32 v6, 2, v4")
    A("v_mul_lo_u32 v6, v6, s33")
    A("v_lshl_add_u32 v8, v3, 1, v6")
    A("v_add_u32 v9, s33, v8")
    A("v_add_u32 v10, s33, v9")
    A("v_add_u32 v11, s33, v10")
    A("s_mul_i32 s40, s35, s33")
    A("s_lshl_b32 s40, s40, 4")
    A("s_lshl_b32 s41, s34, 6")
    A("s_add_u32 s40, s40, s41")
    A("s_lshl_b32 s41, s33, 3")
    RAW = 64
    PK = 16
    for i in range(8):
        for q in range(2):
            for t in range(4):
                A(f"buffer_load_ushort v{RAW + i*8 + q*4 + t}, v{8+t}, s[8:11], s40 offen")
            A("s_add_u32 s40, s40, s41")
    A("v_mov_b32 v12, 0")
    A(f"v_mov_b32 v13, {ONES:#x}")
    for i in range(8):
        A(f"s_waitcnt vmcnt({(7-i)*8})")
        for p in range(4):
            A(f"v_lshl_or_b32 v{PK+i*4+p}, v{RAW+i*8+2*p+1}, 16, v{RAW+i*8+2*p}")
    for i in range(32):
        A(f"v_dot2c_f32_bf16 v12, v{PK+i}, v13")
    A("s_add_u32 s42, s36, 4096")
    for i in range(8):
        so = "s36" if i < 4 else "s42"
        A(f"buffer_store_dwordx4 v[{PK+4*i}:{PK+4*i+3}], v5, s[4:7], {so} offen offset:{(i%4)*1024}")
    A("s_cmp_eq_u32 s37, 0")
    A("s_cbranch_scc1 prep_end")
    A("s_nop 4")
    cross_half_add(A, 12, 14)
    A("v_lshlrev_b32 v15, 2, v3")
    A("s_lshl_b32 s43, s3, 7")
    A("v_add_u32 v14, s43, v15")
    A("ds_write_b32 v14, v12")
    A("s_waitcnt lgkmcnt(0)")
    A("s_barrier")
    A("s_cmp_lg_u32 s3, 0")
    A("s_cbranch_scc1 prep_end")
    A("ds_read_b32 v16, v15")
    A("ds_read_b32 v17, v15 offset:128")
    A("ds_read_b32 v18, v15 offset:256")
    A("ds_read_b32 v19, v15 offset:384")
    A("s_waitcnt lgkmcnt(0)")
    A("v_add_f32 v16, v16, v17")
    A("v_add_f32 v18, v18, v19")
    A("v_add_f32 v16, v16, v18")
    A("buffer_store_dword v16, v15, s[4:7], s37 offen")
    A("s_branch prep_end")

    A.label("prep_x")
    make_srd(A, 8, 20, 2048 * 512 * 2)
    A("s_sub_u32 s34, s2, 176")
    A("v_lshlrev_b32 v8, 10, v3")
    A("v_lshl_add_u32 v8, v4, 3, v8")
    A("s_lshl_b32 s40, s34, 15")
    A("s_lshl_b32 s41, s35, 5")
    A("s_add_u32 s40, s40, s41")
    PK = 16
    for i in range(8):
        A(f"buffer_load_dwordx2 v[{PK+4*i}:{PK+4*i+1}], v8, s[8:11], s40 offen offset:{i*32}")
        A(f"buffer_load_dwordx2 v[{PK+4*i+2}:{PK+4*i+3}], v8, s[8:11], s40 offen offset:{i*32+16}")
    A("v_mov_b32 v12, 0")
    A("v_mov_b32 v13, 0")
    A(f"v_mov_b32 v14, {ONES:#x}")
    A("s_lshl_b32 s36, s34, 5")
    A("s_add_u32 s36, s36, s35")
    A("s_lshl_b32 s36, s36, 10")
    if XF[0]:
        A(f"s_add_u32 s36, s36, {XF[0]:#x}")
    A("s_add_u32 s42, s36, 4096")
    A("s_waitcnt vmcnt(0)")
    for i in range(8):
        so = "s36" if i < 4 else "s42"
        A(f"buffer_store_dwordx4 v[{PK+4*i}:{PK+4*i+3}], v5, s[4:7], {so} offen offset:{(i%4)*1024}")
    for i in range(32):
        A(f"v_dot2c_f32_bf16 v12, v{PK+i}, v14")
        A(f"v_dot2c_f32_bf16 v13, v{PK+i}, v{PK+i}")
    A("s_nop 4")
    cross_half_add(A, 12, 15)
    cross_half_add(A, 13, 15)
    A("v_cmp_eq_u32 vcc, 0, v4")
    A("s_nop 1")
    A("v_cndmask_b32 v56, 0, v12, vcc")
    A("v_cndmask_b32 v57, 0, v13, vcc")
    A("v_mov_b32 v58, 0")
    A("v_mov_b32 v59, 0")
    A("v_lshlrev_b32 v8, 7, v3")
    A("v_lshl_add_u32 v8, v4, 4, v8")
    A("s_lshl_b32 s40, s34, 12")
    A("s_lshl_b32 s41, s3, 5")
    A("s_add_u32 s40, s40, s41")
    A(f"s_add_u32 s40, s40, {ST[0]:#x}")
    A("buffer_store_dwordx4 v[56:59], v8, s[4:7], s40 offen")
    A.label("prep_end")
    A("s_endpgm")
    return ("prep_kernel", 128, 0, 64)


def gen_g1(A, kind):
    NG = 3 if kind == "qkv" else 4
    nwg = 256 if kind == "qkv" else 224
    names = []
    for layer in range(2):
        nm = f"{kind}_l{layer}_kernel"
        names.append(nm)
        kernel_header(A, nm)
        xi = (0 if layer == 0 else 2) if kind == "qkv" else (1 if layer == 0 else 3)
        A(f"s_mov_b32 s20, {XF[xi]:#x}")
        A(f"s_mov_b32 s21, {ST[xi]:#x}")
        A(f"s_branch {kind}_body")
    A.raw(".p2align 6")
    A.label(f"{kind}_body")
    A(f"s_cmp_ge_u32 s2, {nwg}")
    A(f"s_cbranch_scc1 {kind}_end")
    A("s_load_dwordx2 s[16:17], s[0:1], 64")
    VLANE, VN32, VHH, VL16 = 1, 2, 3, 4
    lane_setup(A, VLANE, 3, vn32=VN32, vhh=VHH, vl16=VL16)
    if kind == "qkv":
        A("s_and_b32 s24, s2, 7")
        A("s_lshr_b32 s25, s2, 3")
        A("s_lshr_b32 s22, s24, 1")
        A("s_lshl_b32 s22, s22, 2")
        A("s_lshr_b32 s26, s25, 3")
        A("s_add_u32 s22, s22, s26")
        A("s_and_b32 s23, s24, 1")
        A("s_lshl_b32 s23, s23, 3")
        A("s_and_b32 s26, s25, 7")
        A("s_add_u32 s23, s23, s26")
    else:
        A("s_and_b32 s24, s2, 7")
        A("s_lshr_b32 s25, s2, 3")
        A("s_mul_i32 s26, s25, 9363")
        A("s_lshr_b32 s26, s26, 16")
        A("s_lshr_b32 s22, s24, 1")
        A("s_lshl_b32 s22, s22, 2")
        A("s_add_u32 s22, s22, s26")
        A("s_mul_i32 s27, s26, 7")
        A("s_sub_u32 s27, s25, s27")
        A("s_and_b32 s23, s24, 1")
        A("s_mul_i32 s23, s23, 7")
        A("s_add_u32 s23, s23, s27")
    A("s_lshl_b32 s24, s22, 2")
    A("s_add_u32 s24, s24, s3")
    A("s_lshl_b32 s25, s24, 15")
    A("s_add_u32 s25, s25, s20")
    A("s_lshl_b32 s30, s3, 10")
    WF = WQKVF if kind == "qkv" else W1F
    CS = CSQKV if kind == "qkv" else CSW1
    for g in range(NG):
        if kind == "qkv":
            A(f"s_add_u32 s{26+g}, s23, {16*g}")
        else:
            A(f"s_lshl_b32 s{26+g}, s23, 2")
            A(f"s_add_u32 s{26+g}, s{26+g}, {g}")
    A(f"v_mov_b32 v5, s26")
    A(f"v_mov_b32 v6, s27")
    A("v_cmp_eq_u32 vcc, 0, v3")
    A(f"v_mov_b32 v7, s28")
    A(f"v_mov_b32 v8, s{29 if NG == 4 else 28}")
    A("v_cndmask_b32 v5, v6, v5, vcc")
    A("v_cndmask_b32 v6, v8, v7, vcc")
    A("v_lshlrev_b32 v5, 7, v5")
    A("v_lshlrev_b32 v6, 7, v6")
    A("v_lshl_add_u32 v5, v2, 2, v5")
    A("v_lshl_add_u32 v6, v2, 2, v6")
    for g in range(NG):
        A(f"s_lshl_b32 s{26+g}, s{26+g}, 15")
        A(f"s_add_u32 s{26+g}, s{26+g}, s30")
        A(f"s_add_u32 s{26+g}, s{26+g}, {WF:#x}")
    A("v_lshlrev_b32 v7, 7, v2")
    A("v_lshl_add_u32 v7, v3, 6, v7")
    A("s_lshl_b32 s31, s24, 12")
    A("s_add_u32 s31, s31, s21")
    A("s_waitcnt lgkmcnt(0)")
    make_srd(A, 4, 16, WS_BYTES)
    CSL = NG * 32768
    STL = CSL + 512
    VST = 16
    for i in range(4):
        A(f"buffer_load_dwordx4 v[{VST+4*i}:{VST+4*i+3}], v7, s[4:7], s31 offen offset:{16*i}")
    A(f"s_mov_b32 s33, {CS:#x}")
    A(f"s_mov_b32 m0, {CSL:#x}")
    A("s_nop 0")
    A("buffer_load_dword v5, s[4:7], s33 offen lds")
    A(f"s_mov_b32 m0, {CSL+256:#x}")
    A("s_nop 0")
    A("buffer_load_dword v6, s[4:7], s33 offen lds")
    for c in range(8):
        for g in range(NG):
            A(f"s_add_u32 m0, s30, {g*32768 + c*4096:#x}")
            if c == 0:
                A(f"s_nop 0")
                A(f"buffer_load_dwordx4 v{VL16}, s[4:7], s{26+g} offen lds")
            else:
                A(f"s_add_u32 s34, s{26+g}, {c*4096:#x}")
                A(f"buffer_load_dwordx4 v{VL16}, s[4:7], s34 offen lds")
        for i in range(4):
            s = 4 * c + i
            A(f"buffer_load_dwordx4 a[{4*s}:{4*s+3}], v{VL16}, s[4:7], s25 offen offset:{i*1024}")
        if c < 7:
            A("s_add_u32 s25, s25, 4096")
    VB0, VB1 = 9, 10
    A(f"v_mov_b32 v{VB0}, v{VL16}")
    A(f"v_add_u32 v{VB1}, 0x10000, v{VL16}")
    ACC = 32
    WB = ACC + 16 * NG
    def rd(s, buf):
        for g in range(NG):
            base = VB0 if g < 2 else VB1
            off = (g % 2) * 32768 + s * 1024
            r = WB + buf * NG * 4 + g * 4
            A(f"ds_read_b128 v[{r}:{r+3}], v{base} offset:{off}")
    per = NG + 4
    A(f"s_waitcnt vmcnt({7*per})")
    A("s_barrier")
    rd(0, 0)
    for s in range(32):
        if s + 1 < 32:
            if (s + 1) % 4 == 0:
                c = (s + 1) // 4
                A(f"s_waitcnt vmcnt({(7-c)*per})")
                A("s_barrier")
            rd(s + 1, (s + 1) % 2)
            A(f"s_waitcnt lgkmcnt({NG})")
        else:
            A("s_waitcnt lgkmcnt(0)")
        for g in range(NG):
            r = WB + (s % 2) * NG * 4 + g * 4
            acc = f"v[{ACC+16*g}:{ACC+16*g+15}]"
            cin = acc if s > 0 else "0"
            w = f"v[{r}:{r+3}]"
            x = f"a[{4*s}:{4*s+3}]"
            if kind == "qkv" and g == 2:
                A(f"v_mfma_f32_32x32x16_bf16 {acc}, {x}, {w}, {cin}")
            else:
                A(f"v_mfma_f32_32x32x16_bf16 {acc}, {w}, {x}, {cin}")
    S, Q = 12, 13
    A(f"v_add_f32 v{S}, v{VST}, v{VST+2}")
    A(f"v_add_f32 v{Q}, v{VST+1}, v{VST+3}")
    for i in range(2, 8):
        A(f"v_add_f32 v{S}, v{S}, v{VST+2*i}")
        A(f"v_add_f32 v{Q}, v{Q}, v{VST+2*i+1}")
    cross_half_add(A, S, 14)
    cross_half_add(A, Q, 14)
    NM, RS, RQ = 14, 16, 18
    A(f"v_mul_f32 v{S}, {f32hex(1.0/512)}, v{S}")
    A(f"v_mul_f32 v{Q}, {f32hex(1.0/512)}, v{Q}")
    A(f"v_fma_f32 v{Q}, -v{S}, v{S}, v{Q}")
    A(f"v_max_f32 v{Q}, 0, v{Q}")
    A(f"v_add_f32 v{Q}, {f32hex(1e-5)}, v{Q}")
    A(f"v_rsq_f32 v{RS}, v{Q}")
    A(f"v_sub_f32 v{NM}, 0, v{S}")
    A(f"v_mul_f32 v{RQ}, {f32hex(QSCALE)}, v{RS}")
    VC = 20
    A(f"v_lshlrev_b32 v{VC}, 4, v{VHH}")
    VCS = 30
    A(f"v_add_u32 v{VCS}, {CSL:#x}, v{VC}")
    CSR = WB
    PKR = 0
    def epi_T(g, scale_reg, relu, store):
        for i in range(4):
            A(f"ds_read_b128 v[{CSR+4*i}:{CSR+4*i+3}], v{VCS} offset:{g*128 + i*32}")
        A("s_waitcnt lgkmcnt(0)")
        a = ACC + 16 * g
        for r in range(0, 16, 2):
            A(f"v_pk_fma_f32 v[{a+r}:{a+r+1}], v[{CSR+r}:{CSR+r+1}], v[{NM}:{NM+1}], v[{a+r}:{a+r+1}] op_sel_hi:[1,0,1]")
        for r in range(0, 16, 2):
            A(f"v_pk_mul_f32 v[{a+r}:{a+r+1}], v[{a+r}:{a+r+1}], v[{scale_reg}:{scale_reg+1}] op_sel_hi:[1,0]")
        for j in range(8):
            A(f"v_cvt_pk_bf16_f32 v{a+j}, v{a+2*j}, v{a+2*j+1}")
        if relu:
            for j in range(8):
                A(f"v_pk_max_i16 v{a+j}, v{a+j}, 0")
        store(a)
    if kind == "qkv":
        A("s_lshl_b32 s34, s23, 7")
        A("s_add_u32 s34, s34, s24")
        A("s_lshl_b32 s34, s34, 10")
        def stq(base):
            def f(a):
                A(f"s_add_u32 s35, s34, {base:#x}")
                A(f"s_add_u32 s36, s35, 0x10000")
                A("s_nop 0")
                A(f"buffer_store_dwordx4 v[{a}:{a+3}], v{VL16}, s[4:7], s35 offen")
                A(f"buffer_store_dwordx4 v[{a+4}:{a+7}], v{VL16}, s[4:7], s36 offen")
            return f
        epi_T(0, RQ, False, stq(QF))
        epi_T(1, RS, False, stq(KF))
        A(f"v_lshlrev_b32 v{VC+1}, 2, v{VN32}")
        A("s_lshl_b32 s35, s3, 8")
        A(f"s_add_u32 s35, s35, {STL:#x}")
        A(f"v_add_u32 v{VC+2}, s35, v{VC+1}")
        A(f"ds_write_b32 v{VC+2}, v{NM}")
        A(f"ds_write_b32 v{VC+2}, v{RS} offset:128")
        A(f"v_add_u32 v{VC+5}, {CSL:#x}, v{VC+1}")
        A(f"ds_read_b32 v{VC+4}, v{VC+5} offset:{2*128}")
        A(f"v_add_u32 v{VC+3}, s35, v{VC}")
        A("s_waitcnt lgkmcnt(0)")
        RSR = ACC
        A("s_nop 1")
        for i in range(4):
            A(f"ds_read_b128 v[{CSR+4*i}:{CSR+4*i+3}], v{VC+3} offset:{i*32}")
        A("s_waitcnt vmcnt(2)")
        for i in range(4):
            A(f"ds_read_b128 v[{RSR+4*i}:{RSR+4*i+3}], v{VC+3} offset:{128 + i*32}")
        A("s_waitcnt lgkmcnt(0)")
        a = ACC + 32
        for r in range(0, 16, 2):
            A(f"v_pk_fma_f32 v[{a+r}:{a+r+1}], v[{CSR+r}:{CSR+r+1}], v[{VC+4}:{VC+5}], v[{a+r}:{a+r+1}] op_sel_hi:[1,0,1]")
        for r in range(0, 16, 2):
            A(f"v_pk_mul_f32 v[{a+r}:{a+r+1}], v[{a+r}:{a+r+1}], v[{RSR+r}:{RSR+r+1}]")
        for j in range(8):
            A(f"v_cvt_pk_bf16_f32 v{a+j}, v{a+2*j}, v{a+2*j+1}")
        A(f"v_lshrrev_b32 v{VC+6}, 4, v{VN32}")
        A(f"v_lshlrev_b32 v{VC+6}, 16, v{VC+6}")
        A(f"v_lshl_add_u32 v{VC+6}, v{VHH}, 8, v{VC+6}")
        A(f"v_and_b32 v{VC+7}, 15, v{VN32}")
        A(f"v_lshl_add_u32 v{VC+6}, v{VC+7}, 4, v{VC+6}")
        A("s_lshl_b32 s35, s23, 17")
        A("s_lshl_b32 s36, s24, 10")
        A("s_add_u32 s35, s35, s36")
        A(f"s_add_u32 s35, s35, {VF:#x}")
        A("s_nop 0")
        A(f"buffer_store_dwordx4 v[{a}:{a+3}], v{VC+6}, s[4:7], s35 offen")
        A(f"buffer_store_dwordx4 v[{a+4}:{a+7}], v{VC+6}, s[4:7], s35 offen offset:512")
    else:
        A("s_mul_i32 s34, s24, 112")
        A("s_lshl_b32 s35, s23, 3")
        A("s_add_u32 s34, s34, s35")
        A("s_lshl_b32 s34, s34, 10")
        A(f"s_add_u32 s34, s34, {HF:#x}")
        A("s_add_u32 s35, s34, 4096")
        def sth(g):
            def f(a):
                so = "s34" if g < 2 else "s35"
                o = (g % 2) * 2048
                A(f"buffer_store_dwordx4 v[{a}:{a+3}], v{VL16}, s[4:7], {so} offen offset:{o}")
                A(f"buffer_store_dwordx4 v[{a+4}:{a+7}], v{VL16}, s[4:7], {so} offen offset:{o+1024}")
            return f
        for g in range(4):
            epi_T(g, RS, True, sth(g))
    A.label(f"{kind}_end")
    A("s_endpgm")
    return [(n, 128, 128, 64) for n in names]


def gen_attn(A, U=4):
    nm = "attn_kernel"
    kernel_header(A, nm)
    A("s_cmp_ge_u32 s2, 256")
    A("s_cbranch_scc1 attn_end")
    A("s_load_dwordx2 s[16:17], s[0:1], 64")
    VLANE, VN32, VHH, VL16 = 1, 2, 3, 4
    lane_setup(A, VLANE, 3, vn32=VN32, vhh=VHH, vl16=VL16)
    A("s_and_b32 s20, s2, 31")
    A("s_lshr_b32 s21, s2, 5")
    A("s_lshl_b32 s22, s21, 3")
    A("s_add_u32 s22, s22, s3")
    A("s_lshl_b32 s23, s20, 16")
    A("s_lshl_b32 s24, s22, 10")
    A("s_add_u32 s24, s24, s23")
    A(f"s_add_u32 s24, s24, {QF:#x}")
    A("s_lshl_b32 s25, s3, 11")
    A("s_add_u32 s26, s23, s25")
    A(f"s_add_u32 s27, s26, {VF:#x}")
    A(f"s_add_u32 s26, s26, {KF:#x}")
    Q, K, V, S0, S1, P0, P1, O, C = 8, 12, 16, 24, 40, 56, 64, 72, 88
    VK, VV = 5, 6
    A("s_waitcnt lgkmcnt(0)")
    make_srd(A, 4, 16, WS_BYTES)
    A(f"buffer_load_dwordx4 v[{Q}:{Q+3}], v{VL16}, s[4:7], s24 offen")
    for c in range(4):
        A(f"s_add_u32 m0, s25, {c*16384:#x}")
        if c:
            A(f"s_add_u32 s26, s26, 16384")
        else:
            A("s_nop 0")
        A(f"buffer_load_dwordx4 v{VL16}, s[4:7], s26 offen lds")
        A(f"buffer_load_dwordx4 v{VL16}, s[4:7], s26 offen offset:1024 lds")
        A(f"s_add_u32 m0, s25, {65536 + c*16384:#x}")
        if c:
            A(f"s_add_u32 s27, s27, 16384")
        else:
            A("s_nop 0")
        A(f"buffer_load_dwordx4 v{VL16}, s[4:7], s27 offen lds")
        A(f"buffer_load_dwordx4 v{VL16}, s[4:7], s27 offen offset:1024 lds")
    A("s_mov_b32 s30, 0x0000ffff")
    A("s_mov_b32 s31, 0x0000ffff")
    for i in range(16):
        A(f"v_mov_b32 v{C+i}, 0")
    A("s_mov_b32 s33, 3")
    A("s_mov_b32 s34, 0")
    A("s_waitcnt vmcnt(12)")
    A("s_barrier")
    A.label("attn_pass")
    A(f"v_and_b32 v{VV}, 15, v{VLANE}")
    A(f"v_lshlrev_b32 v{VV}, 4, v{VV}")
    A(f"v_lshl_add_u32 v{VV}, v{VHH}, 8, v{VV}")
    A(f"v_add_u32 v{VV}, 0x10000, v{VV}")
    A(f"v_mov_b32 v{VK}, v{VL16}")
    A(f"ds_read_b128 v[{K}:{K+3}], v{VK}")
    for i in range(8):
        A(f"v_mov_b32 v{V+i}, {ONES:#x}")
    for i in range(8):
        A(f"v_mov_b32 v{P1+i}, 0")
    for i in range(16):
        A(f"v_mov_b32 v{O+i}, 0")
    A("s_waitcnt lgkmcnt(0)")
    A(f"v_mfma_f32_32x32x16_bf16 v[{S0}:{S0+15}], v[{K}:{K+3}], v[{Q}:{Q+3}], v[{C}:{C+15}]")
    A(f"ds_read_b128 v[{K}:{K+3}], v{VK} offset:1024")
    A("s_mov_b32 s32, 0")
    A("s_waitcnt lgkmcnt(0)")
    A("s_nop 7")
    A("s_nop 7")
    A.raw(".p2align 6")
    A.label("attn_loop")
    A("s_cmp_eq_u32 s32, s33")
    A("s_cbranch_scc0 attn_nobar")
    A("s_waitcnt vmcnt(0)")
    A("s_barrier")
    A.label("attn_nobar")
    for u in range(U):
        Sc, Sn = (S0, S1) if u % 2 == 0 else (S1, S0)
        Pc, Pp = (P0, P1) if u % 2 == 0 else (P1, P0)
        e = [f"v_exp_f32 v{Sc+i}, v{Sc+i}" for i in range(16)]
        c = [f"v_cvt_pk_bf16_f32 v{Pc+i}, v{Sc+2*i}, v{Sc+2*i+1}" for i in range(8)]
        first = (u == 0)
        A("s_waitcnt lgkmcnt(2)")
        A(f"v_mfma_f32_32x32x16_bf16 v[{Sn}:{Sn+15}], v[{K}:{K+3}], v[{Q}:{Q+3}], v[{C}:{C+15}]")
        for x in e[:4]:
            A(x)
        A("s_waitcnt lgkmcnt(0)")
        A(f"v_mfma_f32_32x32x16_bf16 v[{O}:{O+15}], v[{V}:{V+3}], v[{Pp}:{Pp+3}], v[{O}:{O+15}]")
        A(f"ds_read_b128 v[{K}:{K+3}], v{VK} offset:{(u+2)*1024}")
        for x in e[4:8]:
            A(x)
        A(f"v_mfma_f32_32x32x16_bf16 v[{O}:{O+15}], v[{V+4}:{V+7}], v[{Pp+4}:{Pp+7}], v[{O}:{O+15}]")
        for x in e[8:10]:
            A(x)
        A("s_mov_b64 exec, s[30:31]")
        A(f"ds_read_b128 v[{V}:{V+3}], v{VV} offset:{u*1024}")
        A(f"ds_read_b128 v[{V+4}:{V+7}], v{VV} offset:{u*1024+512}")
        A("s_mov_b64 exec, -1")
        seq = [c[0], e[10], e[11], c[1], e[12], e[13], c[2], e[14], e[15], c[3], c[4], c[5], c[6], c[7]]
        for x in seq:
            A(x)
    A(f"v_add_u32 v{VK}, {U*1024}, v{VK}")
    A(f"v_add_u32 v{VV}, {U*1024}, v{VV}")
    A("s_add_u32 s32, s32, 1")
    A(f"s_cmp_lt_u32 s32, {64//U}")
    A("s_cbranch_scc1 attn_loop")
    Pl = P1 if (U - 1) % 2 == 1 else P0
    A("s_waitcnt lgkmcnt(0)")
    A(f"v_mfma_f32_32x32x16_bf16 v[{O}:{O+15}], v[{V}:{V+3}], v[{Pl}:{Pl+3}], v[{O}:{O+15}]")
    A(f"v_mfma_f32_32x32x16_bf16 v[{O}:{O+15}], v[{V+4}:{V+7}], v[{Pl+4}:{Pl+7}], v[{O}:{O+15}]")
    A("s_nop 15")
    A("s_nop 3")
    A("s_cmp_lg_u32 s34, 0")
    A("s_cbranch_scc1 attn_fin")
    A(f"v_mov_b32 v7, {f32hex(2.0**-60)}")
    A(f"v_cmp_nlt_f32 vcc, v7, v{O+8}")
    A(f"v_mov_b32 v7, {f32hex(2.0**60)}")
    A(f"v_cmp_ngt_f32 s[36:37], v7, v{O+8}")
    A("s_nop 1")
    A("s_or_b64 s[36:37], vcc, s[36:37]")
    A("s_cbranch_scc0 attn_fin")
    A("s_mov_b32 s34, 1")
    A("s_mov_b32 s33, 9999")
    A(f"v_mov_b32 v{VK}, v{VL16}")
    A(f"v_mov_b32 v7, 0xff800000")
    A("s_mov_b32 s32, 0")
    A.label("attn_max_loop")
    A(f"ds_read_b128 v[{K}:{K+3}], v{VK}")
    A("s_waitcnt lgkmcnt(0)")
    A(f"v_mfma_f32_32x32x16_bf16 v[{S0}:{S0+15}], v[{K}:{K+3}], v[{Q}:{Q+3}], 0")
    A("s_nop 15")
    A("s_nop 3")
    for i in range(0, 16, 2):
        A(f"v_max3_f32 v7, v7, v{S0+i}, v{S0+i+1}")
    A(f"v_add_u32 v{VK}, 1024, v{VK}")
    A("s_add_u32 s32, s32, 1")
    A("s_cmp_lt_u32 s32, 64")
    A("s_cbranch_scc1 attn_max_loop")
    A(f"v_mov_b32 v{S0}, v7")
    A("s_nop 1")
    A(f"v_permlane32_swap_b32 v7, v{S0}")
    A("s_nop 1")
    A(f"v_max_f32 v7, v7, v{S0}")
    for i in range(16):
        A(f"v_sub_f32 v{C+i}, 0, v7")
    A("s_branch attn_pass")
    A.label("attn_fin")
    A(f"v_rcp_f32 v7, v{O+8}")
    A("s_nop 0")
    for i in range(8):
        A(f"v_mul_f32 v{O+i}, v7, v{O+i}")
    for j in range(4):
        A(f"v_cvt_pk_bf16_f32 v{O+j}, v{O+2*j}, v{O+2*j+1}")
    A("s_lshl_b32 s24, s22, 5")
    A("s_add_u32 s24, s24, s20")
    A("s_lshl_b32 s24, s24, 10")
    A(f"s_add_u32 s24, s24, {OF:#x}")
    A("s_nop 0")
    A(f"buffer_store_dwordx4 v[{O}:{O+3}], v{VL16}, s[4:7], s24 offen")
    A.label("attn_end")
    A("s_endpgm")
    return [(nm, 104, 0, 64)]


def gen_g2(A, kind):
    KS = 32 if kind == "wo" else 112
    KW = KS // 4
    D = min(KW, 14)
    names = []
    for layer in range(2):
        nm = f"{kind}_l{layer}_kernel"
        names.append(nm)
        kernel_header(A, nm)
        if kind == "wo":
            xin, xout = (0, 1) if layer == 0 else (2, 3)
        else:
            xin, xout = (1, 2) if layer == 0 else (3, None)
        A(f"s_mov_b32 s20, {XF[xin]:#x}")
        A(f"s_mov_b32 s21, {XF[xout] if xout is not None else 0:#x}")
        A(f"s_mov_b32 s19, {ST[xout] if xout is not None else 0:#x}")
        A(f"s_mov_b32 s18, {1 if xout is None else 0}")
        A(f"s_branch {kind}_body")
    A.raw(".p2align 6")
    A.label(f"{kind}_body")
    A("s_cmp_ge_u32 s2, 256")
    A(f"s_cbranch_scc1 {kind}_end")
    A("s_load_dwordx2 s[16:17], s[0:1], 64")
    A("s_load_dwordx2 s[12:13], s[0:1], 48")
    VLANE, VN32, VHH, VL16 = 1, 2, 3, 4
    lane_setup(A, VLANE, 3, vn32=VN32, vhh=VHH, vl16=VL16)
    A("s_and_b32 s24, s2, 7")
    A("s_lshr_b32 s25, s2, 3")
    A("s_lshl_b32 s22, s24, 2")
    A("s_lshr_b32 s26, s25, 3")
    A("s_add_u32 s22, s22, s26")
    A("s_and_b32 s23, s25, 7")
    A("s_lshr_b32 s26, s3, 1")
    A("s_and_b32 s27, s3, 1")
    A("s_lshl_b32 s28, s22, 1")
    A("s_lshl_b32 s29, s23, 1")
    A("s_add_u32 s30, s28, s26")
    A("s_xor_b32 s26, s26, 1")
    A("s_add_u32 s31, s28, s26")
    A("s_add_u32 s33, s29, s27")
    A("s_xor_b32 s27, s27, 1")
    A("s_add_u32 s34, s29, s27")
    ASRC = OF if kind == "wo" else HF
    WSRC = WOF if kind == "wo" else W2F
    A(f"s_mul_i32 s35, s3, {KW}")
    for dst, idx, base in ((36, 30, ASRC), (37, 31, ASRC), (38, 33, WSRC), (39, 34, WSRC)):
        A(f"s_mul_i32 s{dst}, s{idx}, {KS}")
        A(f"s_add_u32 s{dst}, s{dst}, s35")
        A(f"s_lshl_b32 s{dst}, s{dst}, 10")
        A(f"s_add_u32 s{dst}, s{dst}, {base:#x}")
    A("s_lshl_b32 s40, s30, 5")
    A("s_lshl_b32 s41, s33, 1")
    A("s_add_u32 s40, s40, s41")
    A("s_lshl_b32 s40, s40, 10")
    A("s_add_u32 s41, s40, s20")
    A("s_waitcnt lgkmcnt(0)")
    make_srd(A, 4, 16, WS_BYTES)
    make_srd(A, 8, 12, OUT_BYTES)
    XO = 8
    A(f"buffer_load_dwordx4 v[{XO}:{XO+3}], v{VL16}, s[4:7], s41 offen")
    A(f"buffer_load_dwordx4 v[{XO+4}:{XO+7}], v{VL16}, s[4:7], s41 offen offset:1024")
    def issue(s):
        slot = (s % D) * 16
        o = (s % 4) * 1024
        for k, sreg in enumerate((36, 38, 37, 39)):
            A(f"buffer_load_dwordx4 a[{slot+4*k}:{slot+4*k+3}], v{VL16}, s[4:7], s{sreg} offen offset:{o}")
        if s % 4 == 3:
            for sreg in (36, 37, 38, 39):
                A(f"s_add_u32 s{sreg}, s{sreg}, 4096")
    for s in range(D):
        issue(s)
    ACC = 16
    for s in range(KW):
        issued = min(KW, D + s)
        A(f"s_waitcnt vmcnt({(issued - s - 1) * 4})")
        slot = (s % D) * 16
        XA, WA, XB, WB = (f"a[{slot+4*k}:{slot+4*k+3}]" for k in range(4))
        for u, (w, x) in enumerate(((WA, XA), (WB, XA), (WA, XB), (WB, XB))):
            acc = f"v[{ACC+16*u}:{ACC+16*u+15}]"
            cin = acc if s > 0 else "0"
            A(f"v_mfma_f32_32x32x16_bf16 {acc}, {w}, {x}, {cin}")
        if D + s < KW:
            issue(D + s)
    A("s_nop 15")
    A("s_nop 3")
    for u in range(1, 4):
        A(f"s_xor_b32 s42, s3, {u}")
        A(f"s_mul_i32 s42, s42, 12288")
        A(f"s_add_u32 s42, s42, {(u-1)*4096}")
        A(f"v_add_u32 v5, s42, v{VL16}")
        for i in range(4):
            r = ACC + 16 * u + 4 * i
            A(f"ds_write_b128 v5, v[{r}:{r+3}] offset:{i*1024}")
    A("s_mul_i32 s42, s3, 12288")
    A(f"v_add_u32 v5, s42, v{VL16}")
    A("s_waitcnt lgkmcnt(0)")
    A("s_barrier")
    for u in range(1, 4):
        for i in range(4):
            r = ACC + 16 * u + 4 * i
            A(f"ds_read_b128 v[{r}:{r+3}], v5 offset:{(u-1)*4096 + i*1024}")
    for u in range(1, 4):
        A(f"s_waitcnt lgkmcnt({(3-u)*4})")
        for r in range(0, 16, 2):
            A(f"v_pk_add_f32 v[{ACC+r}:{ACC+r+1}], v[{ACC+r}:{ACC+r+1}], v[{ACC+16*u+r}:{ACC+16*u+r+1}]")
    T = ACC + 16
    for j in range(8):
        A(f"v_lshlrev_b32 v{T+2*j}, 16, v{XO+j}")
        A(f"v_and_b32 v{T+2*j+1}, 0xffff0000, v{XO+j}")
    for r in range(0, 16, 2):
        A(f"v_pk_add_f32 v[{ACC+r}:{ACC+r+1}], v[{ACC+r}:{ACC+r+1}], v[{T+r}:{T+r+1}]")
    for j in range(8):
        A(f"v_cvt_pk_bf16_f32 v{XO+j}, v{ACC+2*j}, v{ACC+2*j+1}")
    A("s_cmp_lg_u32 s18, 0")
    A(f"s_cbranch_scc1 {kind}_final")
    A("s_add_u32 s41, s40, s21")
    A("s_nop 0")
    A(f"buffer_store_dwordx4 v[{XO}:{XO+3}], v{VL16}, s[4:7], s41 offen")
    A(f"buffer_store_dwordx4 v[{XO+4}:{XO+7}], v{VL16}, s[4:7], s41 offen offset:1024")
    A("v_mov_b32 v6, 0")
    A("v_mov_b32 v7, 0")
    A(f"v_mov_b32 v5, {ONES:#x}")
    for j in range(8):
        A(f"v_dot2c_f32_bf16 v6, v{XO+j}, v5")
        A(f"v_dot2c_f32_bf16 v7, v{XO+j}, v{XO+j}")
    A("s_nop 4")
    cross_half_add(A, 6, 5)
    cross_half_add(A, 7, 5)
    A(f"v_lshlrev_b32 v5, 7, v{VN32}")
    A("s_lshl_b32 s42, s30, 12")
    A("s_lshl_b32 s43, s33, 3")
    A("s_add_u32 s42, s42, s43")
    A("s_add_u32 s42, s42, s19")
    A("s_nop 0")
    A("buffer_store_dwordx2 v[6:7], v5, s[4:7], s42 offen")
    A(f"s_branch {kind}_end")
    A.label(f"{kind}_final")
    A(f"v_lshlrev_b32 v5, 10, v{VN32}")
    A(f"v_lshl_add_u32 v5, v{VHH}, 3, v5")
    A("s_lshl_b32 s42, s30, 15")
    A("s_lshl_b32 s43, s33, 6")
    A("s_add_u32 s42, s42, s43")
    A("s_nop 0")
    for sp in range(2):
        for q in range(2):
            r = XO + 4 * sp + 2 * q
            A(f"buffer_store_dwordx2 v[{r}:{r+1}], v5, s[8:11], s42 offen offset:{sp*32 + q*16}")
    A.label(f"{kind}_end")
    A("s_endpgm")
    return [(n, 80, D * 16, 64) for n in names]


def main():
    A = Asm()
    descs = []
    descs.append(gen_prep(A))
    descs += gen_g1(A, "qkv")
    descs += gen_attn(A)
    descs += gen_g2(A, "wo")
    descs += gen_g1(A, "ffn1")
    descs += gen_g2(A, "ffn2")
    launches = [("prep_kernel", 240, 256, 512)]
    for l in range(2):
        launches += [
            (f"qkv_l{l}_kernel", 256, 256, 3 * 32768 + 1536),
            ("attn_kernel", 256, 512, 131072),
            (f"wo_l{l}_kernel", 256, 256, 49152),
            (f"ffn1_l{l}_kernel", 224, 256, 4 * 32768 + 1536),
            (f"ffn2_l{l}_kernel", 256, 256, 49152),
        ]
    ref = open(f"cdna_kernels/{NAME}.s.ref").read().split("\n")
    hdr = [l for l in ref if l.startswith(";") and "@launch" not in l and "Override launch" not in l and "grid=ceil" not in l]
    out = []
    out += hdr
    import os
    nl = int(os.environ.get("NLAUNCH", len(launches)))
    for (k, g, b, lds) in launches[:nl]:
        out.append(f"; @launch kernel={k} grid=({g},1,1) block=({b},1,1) lds={lds}")
    out.append('.amdgcn_target "amdgcn-amd-amdhsa--gfx950"')
    out.append(".text")
    txt = "\n".join(out) + "\n" + A.text()
    txt += '.section .rodata,"a"\n.p2align 6\n'
    for (n, v, a, s) in descs:
        txt += ".p2align 6\n" + kernel_desc(n, v, a, s)
    path = sys.argv[1] if len(sys.argv) > 1 else f"cdna_kernels/{NAME}.s"
    open(path, "w").write(txt)
    print("wrote", path, len(txt), "bytes")


if __name__ == "__main__":
    main()
```

```python
import sys
from asmlib import *

NAME = "interleave_layers__mha_block__dense_activation_relu__prompt"
MB = 1 << 20
XF = [0 * MB, 2 * MB, 4 * MB, 6 * MB]
QF, KF, VF, OF, HF = 8 * MB, 10 * MB, 12 * MB, 14 * MB, 16 * MB
WQKVF, WOF, W1F, W2F = 24 * MB, 26 * MB, 27 * MB, 29 * MB
CSQKV, CSW1 = 31 * MB, 31 * MB + 8192
ST = [32 * MB + i * 262144 for i in range(4)]
WS_BYTES = 268435456
OUT_BYTES = 2048 * 512 * 2
QSCALE = 0.25 * 1.4426950408889634
ONES = 0x3F803F80


import os
STAMP = int(os.environ.get("STAMP", "0"))
DBG = 48 * MB
SB = 64

def stamp(A, i):
    if STAMP:
        A(f"s_memtime s[{SB+2*i}:{SB+2*i+1}]")

def stamp_rt(A, i):
    if STAMP:
        A(f"s_memrealtime s[{80+2*i}:{81+2*i}]")

def stamp_flush(A, slot, waves, n):
    if not STAMP:
        return
    A("s_waitcnt lgkmcnt(0)")
    A(f"s_mul_i32 s84, s2, {waves}")
    A("s_add_u32 s84, s84, s3")
    A("s_lshl_b32 s84, s84, 6")
    A(f"s_add_u32 s84, s84, {DBG + slot * 0x40000:#x}")
    A("v_mov_b32 v101, 0")
    for i in range(n):
        A(f"v_mov_b32 v100, s{SB+2*i}")
        A(f"buffer_store_dword v100, v101, s[4:7], s84 offen offset:{4*i}")
        A("s_nop 1")
    for i in range(2):
        A(f"v_mov_b32 v100, s{80+2*i}")
        A(f"buffer_store_dword v100, v101, s[4:7], s84 offen offset:{32+4*i}")
        A("s_nop 1")

def f32hex(x):
    import struct
    return "0x%08x" % struct.unpack("<I", struct.pack("<f", x))[0]


def lane_setup(A, vlane, vwave_s, vn32=None, vhh=None, vl16=None):
    A(f"v_lshrrev_b32 v{vlane}, 6, v0")
    A("s_nop 0")
    A(f"v_readfirstlane_b32 s{vwave_s}, v{vlane}")
    A(f"v_and_b32 v{vlane}, 63, v0")
    if vn32 is not None:
        A(f"v_and_b32 v{vn32}, 31, v{vlane}")
    if vhh is not None:
        A(f"v_lshrrev_b32 v{vhh}, 5, v{vlane}")
    if vl16 is not None:
        A(f"v_lshlrev_b32 v{vl16}, 4, v{vlane}")


def cross_half_add(A, v, tmp):
    A(f"v_mov_b32 v{tmp}, v{v}")
    A("s_nop 1")
    A(f"v_permlane32_swap_b32 v{v}, v{tmp}")
    A("s_nop 1")
    A(f"v_add_f32 v{v}, v{v}, v{tmp}")


def gen_prep(A):
    kernel_header(A, "prep_kernel")
    A("s_cmp_ge_u32 s2, 240")
    A("s_cbranch_scc1 prep_end")
    A("s_load_dwordx2 s[16:17], s[0:1], 64")
    A("s_load_dwordx4 s[20:23], s[0:1], 0")
    A("s_load_dwordx2 s[24:25], s[0:1], 16")
    A("s_load_dwordx4 s[28:31], s[0:1], 32")
    lane_setup(A, 1, 3, vn32=3, vhh=4, vl16=5)
    A("s_waitcnt lgkmcnt(0)")
    make_srd(A, 4, 16, WS_BYTES)
    A("s_lshl_b32 s35, s3, 3")
    A("s_mov_b32 s37, 0")
    A("s_cmp_lt_u32 s2, 48")
    A("s_cbranch_scc1 prep_wqkv")
    A("s_cmp_lt_u32 s2, 104")
    A("s_cbranch_scc1 prep_w1")
    A("s_cmp_lt_u32 s2, 120")
    A("s_cbranch_scc1 prep_wo")
    A("s_cmp_lt_u32 s2, 176")
    A("s_cbranch_scc1 prep_w2")
    A("s_branch prep_x")

    A.label("prep_wqkv")
    make_srd(A, 8, 22, 512 * 1536 * 2)
    A("s_mov_b32 s33, 3072")
    A("s_mov_b32 s34, s2")
    A("s_lshl_b32 s36, s34, 5")
    A("s_add_u32 s36, s36, s35")
    A("s_lshl_b32 s36, s36, 10")
    A(f"s_add_u32 s36, s36, {WQKVF:#x}")
    A("s_lshl_b32 s37, s34, 7")
    A(f"s_add_u32 s37, s37, {CSQKV:#x}")
    A("s_branch prep_w")

    A.label("prep_w1")
    make_srd(A, 8, 28, 512 * 1792 * 2)
    A("s_mov_b32 s33, 3584")
    A("s_sub_u32 s34, s2, 48")
    A("s_lshl_b32 s36, s34, 5")
    A("s_add_u32 s36, s36, s35")
    A("s_lshl_b32 s36, s36, 10")
    A(f"s_add_u32 s36, s36, {W1F:#x}")
    A("s_lshl_b32 s37, s34, 7")
    A(f"s_add_u32 s37, s37, {CSW1:#x}")
    A("s_branch prep_w")

    A.label("prep_wo")
    make_srd(A, 8, 24, 512 * 512 * 2)
    A("s_mov_b32 s33, 1024")
    A("s_sub_u32 s34, s2, 104")
    A("s_lshl_b32 s36, s34, 5")
    A("s_add_u32 s36, s36, s35")
    A("s_lshl_b32 s36, s36, 10")
    A(f"s_add_u32 s36, s36, {WOF:#x}")
    A("s_branch prep_w")

    A.label("prep_w2")
    make_srd(A, 8, 30, 1792 * 512 * 2)
    A("s_mov_b32 s33, 1024")
    A("s_sub_u32 s38, s2, 120")
    A("s_lshl_b32 s38, s38, 2")
    A("s_add_u32 s38, s38, s3")
    A("s_mul_i32 s34, s38, 4682")
    A("s_lshr_b32 s34, s34, 16")
    A("s_mul_i32 s39, s34, 14")
    A("s_sub_u32 s35, s38, s39")
    A("s_lshl_b32 s35, s35, 3")
    A("s_mul_i32 s36, s34, 112")
    A("s_add_u32 s36, s36, s35")
    A("s_lshl_b32 s36, s36, 10")
    A(f"s_add_u32 s36, s36, {W2F:#x}")

    A.label("prep_w")
    A("v_lshlrev_b32 v6, 2, v4")
    A("v_mul_lo_u32 v6, v6, s33")
    A("v_lshl_add_u32 v8, v3, 1, v6")
    A("v_add_u32 v9, s33, v8")
    A("v_add_u32 v10, s33, v9")
    A("v_add_u32 v11, s33, v10")
    A("s_mul_i32 s40, s35, s33")
    A("s_lshl_b32 s40, s40, 4")
    A("s_lshl_b32 s41, s34, 6")
    A("s_add_u32 s40, s40, s41")
    A("s_lshl_b32 s41, s33, 3")
    RAW = 64
    PK = 16
    for i in range(8):
        for q in range(2):
            for t in range(4):
                A(f"buffer_load_ushort v{RAW + i*8 + q*4 + t}, v{8+t}, s[8:11], s40 offen")
            A("s_add_u32 s40, s40, s41")
    A("v_mov_b32 v12, 0")
    A(f"v_mov_b32 v13, {ONES:#x}")
    for i in range(8):
        A(f"s_waitcnt vmcnt({(7-i)*8})")
        for p in range(4):
            A(f"v_lshl_or_b32 v{PK+i*4+p}, v{RAW+i*8+2*p+1}, 16, v{RAW+i*8+2*p}")
    for i in range(32):
        A(f"v_dot2c_f32_bf16 v12, v{PK+i}, v13")
    A("s_add_u32 s42, s36, 4096")
    for i in range(8):
        so = "s36" if i < 4 else "s42"
        A(f"buffer_store_dwordx4 v[{PK+4*i}:{PK+4*i+3}], v5, s[4:7], {so} offen offset:{(i%4)*1024}")
    A("s_cmp_eq_u32 s37, 0")
    A("s_cbranch_scc1 prep_end")
    A("s_nop 4")
    cross_half_add(A, 12, 14)
    A("v_lshlrev_b32 v15, 2, v3")
    A("s_lshl_b32 s43, s3, 7")
    A("v_add_u32 v14, s43, v15")
    A("ds_write_b32 v14, v12")
    A("s_waitcnt lgkmcnt(0)")
    A("s_barrier")
    A("s_cmp_lg_u32 s3, 0")
    A("s_cbranch_scc1 prep_end")
    A("ds_read_b32 v16, v15")
    A("ds_read_b32 v17, v15 offset:128")
    A("ds_read_b32 v18, v15 offset:256")
    A("ds_read_b32 v19, v15 offset:384")
    A("s_waitcnt lgkmcnt(0)")
    A("v_add_f32 v16, v16, v17")
    A("v_add_f32 v18, v18, v19")
    A("v_add_f32 v16, v16, v18")
    A("buffer_store_dword v16, v15, s[4:7], s37 offen")
    A("s_branch prep_end")

    A.label("prep_x")
    make_srd(A, 8, 20, 2048 * 512 * 2)
    A("s_sub_u32 s34, s2, 176")
    A("v_lshlrev_b32 v8, 10, v3")
    A("v_lshl_add_u32 v8, v4, 3, v8")
    A("s_lshl_b32 s40, s34, 15")
    A("s_lshl_b32 s41, s35, 5")
    A("s_add_u32 s40, s40, s41")
    PK = 16
    for i in range(8):
        A(f"buffer_load_dwordx2 v[{PK+4*i}:{PK+4*i+1}], v8, s[8:11], s40 offen offset:{i*32}")
        A(f"buffer_load_dwordx2 v[{PK+4*i+2}:{PK+4*i+3}], v8, s[8:11], s40 offen offset:{i*32+16}")
    A("v_mov_b32 v12, 0")
    A("v_mov_b32 v13, 0")
    A(f"v_mov_b32 v14, {ONES:#x}")
    A("s_lshl_b32 s36, s34, 5")
    A("s_add_u32 s36, s36, s35")
    A("s_lshl_b32 s36, s36, 10")
    if XF[0]:
        A(f"s_add_u32 s36, s36, {XF[0]:#x}")
    A("s_add_u32 s42, s36, 4096")
    A("s_waitcnt vmcnt(0)")
    for i in range(8):
        so = "s36" if i < 4 else "s42"
        A(f"buffer_store_dwordx4 v[{PK+4*i}:{PK+4*i+3}], v5, s[4:7], {so} offen offset:{(i%4)*1024}")
    for i in range(32):
        A(f"v_dot2c_f32_bf16 v12, v{PK+i}, v14")
        A(f"v_dot2c_f32_bf16 v13, v{PK+i}, v{PK+i}")
    A("s_nop 4")
    cross_half_add(A, 12, 15)
    cross_half_add(A, 13, 15)
    A("v_cmp_eq_u32 vcc, 0, v4")
    A("s_nop 1")
    A("v_cndmask_b32 v56, 0, v12, vcc")
    A("v_cndmask_b32 v57, 0, v13, vcc")
    A("v_mov_b32 v58, 0")
    A("v_mov_b32 v59, 0")
    A("v_lshlrev_b32 v8, 7, v3")
    A("v_lshl_add_u32 v8, v4, 4, v8")
    A("s_lshl_b32 s40, s34, 12")
    A("s_lshl_b32 s41, s3, 5")
    A("s_add_u32 s40, s40, s41")
    A(f"s_add_u32 s40, s40, {ST[0]:#x}")
    A("buffer_store_dwordx4 v[56:59], v8, s[4:7], s40 offen")
    A.label("prep_end")
    A("s_endpgm")
    return ("prep_kernel", 128, 0, 96)


def gen_g1(A, kind):
    NG = 3 if kind == "qkv" else 4
    nwg = 256 if kind == "qkv" else 224
    names = []
    for layer in range(2):
        nm = f"{kind}_l{layer}_kernel"
        names.append(nm)
        kernel_header(A, nm)
        xi = (0 if layer == 0 else 2) if kind == "qkv" else (1 if layer == 0 else 3)
        A(f"s_mov_b32 s20, {XF[xi]:#x}")
        A(f"s_mov_b32 s21, {ST[xi]:#x}")
        A(f"s_branch {kind}_body")
    A.raw(".p2align 6")
    A.label(f"{kind}_body")
    A(f"s_cmp_ge_u32 s2, {nwg}")
    A(f"s_cbranch_scc1 {kind}_end")
    stamp(A, 0); stamp_rt(A, 0)
    A("s_load_dwordx2 s[16:17], s[0:1], 64")
    VLANE, VN32, VHH, VL16 = 1, 2, 3, 4
    lane_setup(A, VLANE, 3, vn32=VN32, vhh=VHH, vl16=VL16)
    if kind == "qkv":
        A("s_and_b32 s24, s2, 7")
        A("s_lshr_b32 s25, s2, 3")
        A("s_lshr_b32 s22, s24, 1")
        A("s_lshl_b32 s22, s22, 2")
        A("s_lshr_b32 s26, s25, 3")
        A("s_add_u32 s22, s22, s26")
        A("s_and_b32 s23, s24, 1")
        A("s_lshl_b32 s23, s23, 3")
        A("s_and_b32 s26, s25, 7")
        A("s_add_u32 s23, s23, s26")
    else:
        A("s_and_b32 s24, s2, 7")
        A("s_lshr_b32 s25, s2, 3")
        A("s_mul_i32 s26, s25, 9363")
        A("s_lshr_b32 s26, s26, 16")
        A("s_lshr_b32 s22, s24, 1")
        A("s_lshl_b32 s22, s22, 2")
        A("s_add_u32 s22, s22, s26")
        A("s_mul_i32 s27, s26, 7")
        A("s_sub_u32 s27, s25, s27")
        A("s_and_b32 s23, s24, 1")
        A("s_mul_i32 s23, s23, 7")
        A("s_add_u32 s23, s23, s27")
    A("s_lshl_b32 s24, s22, 2")
    A("s_add_u32 s24, s24, s3")
    A("s_lshl_b32 s25, s24, 15")
    A("s_add_u32 s25, s25, s20")
    A("s_lshl_b32 s30, s3, 10")
    WF = WQKVF if kind == "qkv" else W1F
    CS = CSQKV if kind == "qkv" else CSW1
    for g in range(NG):
        if kind == "qkv":
            A(f"s_add_u32 s{26+g}, s23, {16*g}")
        else:
            A(f"s_lshl_b32 s{26+g}, s23, 2")
            A(f"s_add_u32 s{26+g}, s{26+g}, {g}")
    A(f"v_mov_b32 v5, s26")
    A(f"v_mov_b32 v6, s27")
    A("v_cmp_eq_u32 vcc, 0, v3")
    A(f"v_mov_b32 v7, s28")
    A(f"v_mov_b32 v8, s{29 if NG == 4 else 28}")
    A("v_cndmask_b32 v5, v6, v5, vcc")
    A("v_cndmask_b32 v6, v8, v7, vcc")
    A("v_lshlrev_b32 v5, 7, v5")
    A("v_lshlrev_b32 v6, 7, v6")
    A("v_lshl_add_u32 v5, v2, 2, v5")
    A("v_lshl_add_u32 v6, v2, 2, v6")
    for g in range(NG):
        A(f"s_lshl_b32 s{26+g}, s{26+g}, 15")
        A(f"s_add_u32 s{26+g}, s{26+g}, s30")
        A(f"s_add_u32 s{26+g}, s{26+g}, {WF:#x}")
    A("v_lshlrev_b32 v7, 7, v2")
    A("v_lshl_add_u32 v7, v3, 6, v7")
    A("s_lshl_b32 s31, s24, 12")
    A("s_add_u32 s31, s31, s21")
    A("s_waitcnt lgkmcnt(0)")
    stamp(A, 1)
    make_srd(A, 4, 16, WS_BYTES)
    CSL = NG * 32768
    STL = CSL + 512
    VST = 16
    for i in range(4):
        A(f"buffer_load_dwordx4 v[{VST+4*i}:{VST+4*i+3}], v7, s[4:7], s31 offen offset:{16*i}")
    A(f"s_mov_b32 s33, {CS:#x}")
    A(f"s_mov_b32 m0, {CSL:#x}")
    A("s_nop 0")
    A("buffer_load_dword v5, s[4:7], s33 offen lds")
    A(f"s_mov_b32 m0, {CSL+256:#x}")
    A("s_nop 0")
    A("buffer_load_dword v6, s[4:7], s33 offen lds")
    for c in range(8):
        for g in range(NG):
            A(f"s_add_u32 m0, s30, {g*32768 + c*4096:#x}")
            if c == 0:
                A(f"s_nop 0")
                A(f"buffer_load_dwordx4 v{VL16}, s[4:7], s{26+g} offen lds")
            else:
                A(f"s_add_u32 s34, s{26+g}, {c*4096:#x}")
                A(f"buffer_load_dwordx4 v{VL16}, s[4:7], s34 offen lds")
        for i in range(4):
            s = 4 * c + i
            A(f"buffer_load_dwordx4 a[{4*s}:{4*s+3}], v{VL16}, s[4:7], s25 offen offset:{i*1024}")
        if c < 7:
            A("s_add_u32 s25, s25, 4096")
    VB0, VB1 = 9, 10
    A(f"v_mov_b32 v{VB0}, v{VL16}")
    A(f"v_add_u32 v{VB1}, 0x10000, v{VL16}")
    ACC = 32
    WB = ACC + 16 * NG
    def rd(s, buf):
        for g in range(NG):
            base = VB0 if g < 2 else VB1
            off = (g % 2) * 32768 + s * 1024
            r = WB + buf * NG * 4 + g * 4
            A(f"ds_read_b128 v[{r}:{r+3}], v{base} offset:{off}")
    per = NG + 4
    stamp(A, 2)
    A(f"s_waitcnt vmcnt({7*per})")
    A("s_barrier")
    stamp(A, 3)
    if STAMP:
        A("s_waitcnt lgkmcnt(0)")
    rd(0, 0)
    for s in range(32):
        if s + 1 < 32:
            if (s + 1) % 4 == 0:
                c = (s + 1) // 4
                A(f"s_waitcnt vmcnt({(7-c)*per})")
                A("s_barrier")
            rd(s + 1, (s + 1) % 2)
            A(f"s_waitcnt lgkmcnt({NG})")
        else:
            A("s_waitcnt lgkmcnt(0)")
        for g in range(NG):
            r = WB + (s % 2) * NG * 4 + g * 4
            acc = f"v[{ACC+16*g}:{ACC+16*g+15}]"
            cin = acc if s > 0 else "0"
            w = f"v[{r}:{r+3}]"
            x = f"a[{4*s}:{4*s+3}]"
            if kind == "qkv" and g == 2:
                A(f"v_mfma_f32_32x32x16_bf16 {acc}, {x}, {w}, {cin}")
            else:
                A(f"v_mfma_f32_32x32x16_bf16 {acc}, {w}, {x}, {cin}")
    stamp(A, 4)
    S, Q = 12, 13
    A(f"v_add_f32 v{S}, v{VST}, v{VST+2}")
    A(f"v_add_f32 v{Q}, v{VST+1}, v{VST+3}")
    for i in range(2, 8):
        A(f"v_add_f32 v{S}, v{S}, v{VST+2*i}")
        A(f"v_add_f32 v{Q}, v{Q}, v{VST+2*i+1}")
    cross_half_add(A, S, 14)
    cross_half_add(A, Q, 14)
    NM, RS, RQ = 14, 16, 18
    A(f"v_mul_f32 v{S}, {f32hex(1.0/512)}, v{S}")
    A(f"v_mul_f32 v{Q}, {f32hex(1.0/512)}, v{Q}")
    A(f"v_fma_f32 v{Q}, -v{S}, v{S}, v{Q}")
    A(f"v_max_f32 v{Q}, 0, v{Q}")
    A(f"v_add_f32 v{Q}, {f32hex(1e-5)}, v{Q}")
    A(f"v_rsq_f32 v{RS}, v{Q}")
    A(f"v_sub_f32 v{NM}, 0, v{S}")
    A(f"v_mul_f32 v{RQ}, {f32hex(QSCALE)}, v{RS}")
    VC = 20
    A(f"v_lshlrev_b32 v{VC}, 4, v{VHH}")
    VCS = 30
    A(f"v_add_u32 v{VCS}, {CSL:#x}, v{VC}")
    CSR = WB
    PKR = 0
    def epi_T(g, scale_reg, relu, store):
        for i in range(4):
            A(f"ds_read_b128 v[{CSR+4*i}:{CSR+4*i+3}], v{VCS} offset:{g*128 + i*32}")
        A("s_waitcnt lgkmcnt(0)")
        a = ACC + 16 * g
        for r in range(0, 16, 2):
            A(f"v_pk_fma_f32 v[{a+r}:{a+r+1}], v[{CSR+r}:{CSR+r+1}], v[{NM}:{NM+1}], v[{a+r}:{a+r+1}] op_sel_hi:[1,0,1]")
        for r in range(0, 16, 2):
            A(f"v_pk_mul_f32 v[{a+r}:{a+r+1}], v[{a+r}:{a+r+1}], v[{scale_reg}:{scale_reg+1}] op_sel_hi:[1,0]")
        for j in range(8):
            A(f"v_cvt_pk_bf16_f32 v{a+j}, v{a+2*j}, v{a+2*j+1}")
        if relu:
            for j in range(8):
                A(f"v_pk_max_i16 v{a+j}, v{a+j}, 0")
        store(a)
    if kind == "qkv":
        A("s_lshl_b32 s34, s23, 7")
        A("s_add_u32 s34, s34, s24")
        A("s_lshl_b32 s34, s34, 10")
        def stq(base):
            def f(a):
                A(f"s_add_u32 s35, s34, {base:#x}")
                A(f"s_add_u32 s36, s35, 0x10000")
                A("s_nop 0")
                A(f"buffer_store_dwordx4 v[{a}:{a+3}], v{VL16}, s[4:7], s35 offen")
                A(f"buffer_store_dwordx4 v[{a+4}:{a+7}], v{VL16}, s[4:7], s36 offen")
            return f
        epi_T(0, RQ, False, stq(QF))
        epi_T(1, RS, False, stq(KF))
        A(f"v_lshlrev_b32 v{VC+1}, 2, v{VN32}")
        A("s_lshl_b32 s35, s3, 8")
        A(f"s_add_u32 s35, s35, {STL:#x}")
        A(f"v_add_u32 v{VC+2}, s35, v{VC+1}")
        A(f"ds_write_b32 v{VC+2}, v{NM}")
        A(f"ds_write_b32 v{VC+2}, v{RS} offset:128")
        A(f"v_add_u32 v{VC+5}, {CSL:#x}, v{VC+1}")
        A(f"ds_read_b32 v{VC+4}, v{VC+5} offset:{2*128}")
        A(f"v_add_u32 v{VC+3}, s35, v{VC}")
        A("s_waitcnt lgkmcnt(0)")
        RSR = ACC
        A("s_nop 1")
        for i in range(4):
            A(f"ds_read_b128 v[{CSR+4*i}:{CSR+4*i+3}], v{VC+3} offset:{i*32}")
        A("s_waitcnt vmcnt(2)")
        for i in range(4):
            A(f"ds_read_b128 v[{RSR+4*i}:{RSR+4*i+3}], v{VC+3} offset:{128 + i*32}")
        A("s_waitcnt lgkmcnt(0)")
        a = ACC + 32
        for r in range(0, 16, 2):
            A(f"v_pk_fma_f32 v[{a+r}:{a+r+1}], v[{CSR+r}:{CSR+r+1}], v[{VC+4}:{VC+5}], v[{a+r}:{a+r+1}] op_sel_hi:[1,0,1]")
        for r in range(0, 16, 2):
            A(f"v_pk_mul_f32 v[{a+r}:{a+r+1}], v[{a+r}:{a+r+1}], v[{RSR+r}:{RSR+r+1}]")
        for j in range(8):
            A(f"v_cvt_pk_bf16_f32 v{a+j}, v{a+2*j}, v{a+2*j+1}")
        A(f"v_lshrrev_b32 v{VC+6}, 4, v{VN32}")
        A(f"v_lshlrev_b32 v{VC+6}, 16, v{VC+6}")
        A(f"v_lshl_add_u32 v{VC+6}, v{VHH}, 8, v{VC+6}")
        A(f"v_and_b32 v{VC+7}, 15, v{VN32}")
        A(f"v_lshl_add_u32 v{VC+6}, v{VC+7}, 4, v{VC+6}")
        A("s_lshl_b32 s35, s23, 17")
        A("s_lshl_b32 s36, s24, 10")
        A("s_add_u32 s35, s35, s36")
        A(f"s_add_u32 s35, s35, {VF:#x}")
        A("s_nop 0")
        A(f"buffer_store_dwordx4 v[{a}:{a+3}], v{VC+6}, s[4:7], s35 offen")
        A(f"buffer_store_dwordx4 v[{a+4}:{a+7}], v{VC+6}, s[4:7], s35 offen offset:512")
    else:
        A("s_mul_i32 s34, s24, 112")
        A("s_lshl_b32 s35, s23, 3")
        A("s_add_u32 s34, s34, s35")
        A("s_lshl_b32 s34, s34, 10")
        A(f"s_add_u32 s34, s34, {HF:#x}")
        A("s_add_u32 s35, s34, 4096")
        def sth(g):
            def f(a):
                so = "s34" if g < 2 else "s35"
                o = (g % 2) * 2048
                A(f"buffer_store_dwordx4 v[{a}:{a+3}], v{VL16}, s[4:7], {so} offen offset:{o}")
                A(f"buffer_store_dwordx4 v[{a+4}:{a+7}], v{VL16}, s[4:7], {so} offen offset:{o+1024}")
            return f
        for g in range(4):
            epi_T(g, RS, True, sth(g))
    stamp(A, 5)
    if STAMP:
        A("s_waitcnt vmcnt(0)")
    stamp(A, 6); stamp_rt(A, 1)
    stamp_flush(A, 1 if kind == "qkv" else 4, 4, 7)
    A.label(f"{kind}_end")
    A("s_endpgm")
    return [(n, 128, 128, 96) for n in names]


def gen_attn(A, U=4):
    nm = "attn_kernel"
    kernel_header(A, nm)
    A("s_cmp_ge_u32 s2, 256")
    A("s_cbranch_scc1 attn_end")
    stamp(A, 0); stamp_rt(A, 0)
    A("s_load_dwordx2 s[16:17], s[0:1], 64")
    VLANE, VN32, VHH, VL16 = 1, 2, 3, 4
    lane_setup(A, VLANE, 3, vn32=VN32, vhh=VHH, vl16=VL16)
    A("s_and_b32 s20, s2, 31")
    A("s_lshr_b32 s21, s2, 5")
    A("s_lshl_b32 s22, s21, 3")
    A("s_add_u32 s22, s22, s3")
    A("s_lshl_b32 s23, s20, 16")
    A("s_lshl_b32 s24, s22, 10")
    A("s_add_u32 s24, s24, s23")
    A(f"s_add_u32 s24, s24, {QF:#x}")
    A("s_lshl_b32 s25, s3, 11")
    A("s_add_u32 s26, s23, s25")
    A(f"s_add_u32 s27, s26, {VF:#x}")
    A(f"s_add_u32 s26, s26, {KF:#x}")
    Q, K, V, S0, S1, P0, P1, O, C = 8, 12, 16, 24, 40, 56, 64, 72, 88
    VK, VV = 5, 6
    A("s_waitcnt lgkmcnt(0)")
    stamp(A, 1)
    make_srd(A, 4, 16, WS_BYTES)
    A(f"buffer_load_dwordx4 v[{Q}:{Q+3}], v{VL16}, s[4:7], s24 offen")
    for c in range(4):
        A(f"s_add_u32 m0, s25, {c*16384:#x}")
        if c:
            A(f"s_add_u32 s26, s26, 16384")
        else:
            A("s_nop 0")
        A(f"buffer_load_dwordx4 v{VL16}, s[4:7], s26 offen lds")
        A(f"buffer_load_dwordx4 v{VL16}, s[4:7], s26 offen offset:1024 lds")
        A(f"s_add_u32 m0, s25, {65536 + c*16384:#x}")
        if c:
            A(f"s_add_u32 s27, s27, 16384")
        else:
            A("s_nop 0")
        A(f"buffer_load_dwordx4 v{VL16}, s[4:7], s27 offen lds")
        A(f"buffer_load_dwordx4 v{VL16}, s[4:7], s27 offen offset:1024 lds")
    A("s_mov_b32 s30, 0x0000ffff")
    A("s_mov_b32 s31, 0x0000ffff")
    for i in range(16):
        A(f"v_mov_b32 v{C+i}, 0")
    A("s_mov_b32 s33, 3")
    A("s_mov_b32 s34, 0")
    stamp(A, 2)
    A("s_waitcnt vmcnt(12)")
    A("s_barrier")
    stamp(A, 3)
    A.label("attn_pass")
    A(f"v_and_b32 v{VV}, 15, v{VLANE}")
    A(f"v_lshlrev_b32 v{VV}, 4, v{VV}")
    A(f"v_lshl_add_u32 v{VV}, v{VHH}, 8, v{VV}")
    A(f"v_add_u32 v{VV}, 0x10000, v{VV}")
    A(f"v_mov_b32 v{VK}, v{VL16}")
    A(f"ds_read_b128 v[{K}:{K+3}], v{VK}")
    for i in range(8):
        A(f"v_mov_b32 v{V+i}, {ONES:#x}")
    for i in range(8):
        A(f"v_mov_b32 v{P1+i}, 0")
    for i in range(16):
        A(f"v_mov_b32 v{O+i}, 0")
    A("s_waitcnt lgkmcnt(0)")
    A(f"v_mfma_f32_32x32x16_bf16 v[{S0}:{S0+15}], v[{K}:{K+3}], v[{Q}:{Q+3}], v[{C}:{C+15}]")
    A(f"ds_read_b128 v[{K}:{K+3}], v{VK} offset:1024")
    A("s_mov_b32 s32, 0")
    A("s_waitcnt lgkmcnt(0)")
    A("s_nop 7")
    A("s_nop 7")
    A.raw(".p2align 6")
    A.label("attn_loop")
    A("s_cmp_eq_u32 s32, s33")
    A("s_cbranch_scc0 attn_nobar")
    A("s_waitcnt vmcnt(0)")
    A("s_barrier")
    A.label("attn_nobar")
    for u in range(U):
        Sc, Sn = (S0, S1) if u % 2 == 0 else (S1, S0)
        Pc, Pp = (P0, P1) if u % 2 == 0 else (P1, P0)
        e = [f"v_exp_f32 v{Sc+i}, v{Sc+i}" for i in range(16)]
        c = [f"v_cvt_pk_bf16_f32 v{Pc+i}, v{Sc+2*i}, v{Sc+2*i+1}" for i in range(8)]
        first = (u == 0)
        A("s_waitcnt lgkmcnt(2)")
        A(f"v_mfma_f32_32x32x16_bf16 v[{Sn}:{Sn+15}], v[{K}:{K+3}], v[{Q}:{Q+3}], v[{C}:{C+15}]")
        for x in e[:4]:
            A(x)
        A("s_waitcnt lgkmcnt(0)")
        A(f"v_mfma_f32_32x32x16_bf16 v[{O}:{O+15}], v[{V}:{V+3}], v[{Pp}:{Pp+3}], v[{O}:{O+15}]")
        A(f"ds_read_b128 v[{K}:{K+3}], v{VK} offset:{(u+2)*1024}")
        for x in e[4:8]:
            A(x)
        A(f"v_mfma_f32_32x32x16_bf16 v[{O}:{O+15}], v[{V+4}:{V+7}], v[{Pp+4}:{Pp+7}], v[{O}:{O+15}]")
        for x in e[8:10]:
            A(x)
        A("s_mov_b64 exec, s[30:31]")
        A(f"ds_read_b128 v[{V}:{V+3}], v{VV} offset:{u*1024}")
        A(f"ds_read_b128 v[{V+4}:{V+7}], v{VV} offset:{u*1024+512}")
        A("s_mov_b64 exec, -1")
        seq = [c[0], e[10], e[11], c[1], e[12], e[13], c[2], e[14], e[15], c[3], c[4], c[5], c[6], c[7]]
        for x in seq:
            A(x)
    A(f"v_add_u32 v{VK}, {U*1024}, v{VK}")
    A(f"v_add_u32 v{VV}, {U*1024}, v{VV}")
    A("s_add_u32 s32, s32, 1")
    A(f"s_cmp_lt_u32 s32, {64//U}")
    A("s_cbranch_scc1 attn_loop")
    Pl = P1 if (U - 1) % 2 == 1 else P0
    stamp(A, 4)
    A("s_waitcnt lgkmcnt(0)")
    A(f"v_mfma_f32_32x32x16_bf16 v[{O}:{O+15}], v[{V}:{V+3}], v[{Pl}:{Pl+3}], v[{O}:{O+15}]")
    A(f"v_mfma_f32_32x32x16_bf16 v[{O}:{O+15}], v[{V+4}:{V+7}], v[{Pl+4}:{Pl+7}], v[{O}:{O+15}]")
    A("s_nop 15")
    A("s_nop 3")
    A("s_cmp_lg_u32 s34, 0")
    A("s_cbranch_scc1 attn_fin")
    A(f"v_mov_b32 v7, {f32hex(2.0**-60)}")
    A(f"v_cmp_nlt_f32 vcc, v7, v{O+8}")
    A(f"v_mov_b32 v7, {f32hex(2.0**60)}")
    A(f"v_cmp_ngt_f32 s[36:37], v7, v{O+8}")
    A("s_nop 1")
    A("s_or_b64 s[36:37], vcc, s[36:37]")
    A("s_cbranch_scc0 attn_fin")
    A("s_mov_b32 s34, 1")
    A("s_mov_b32 s33, 9999")
    A(f"v_mov_b32 v{VK}, v{VL16}")
    A(f"v_mov_b32 v7, 0xff800000")
    A("s_mov_b32 s32, 0")
    A.label("attn_max_loop")
    A(f"ds_read_b128 v[{K}:{K+3}], v{VK}")
    A("s_waitcnt lgkmcnt(0)")
    A(f"v_mfma_f32_32x32x16_bf16 v[{S0}:{S0+15}], v[{K}:{K+3}], v[{Q}:{Q+3}], 0")
    A("s_nop 15")
    A("s_nop 3")
    for i in range(0, 16, 2):
        A(f"v_max3_f32 v7, v7, v{S0+i}, v{S0+i+1}")
    A(f"v_add_u32 v{VK}, 1024, v{VK}")
    A("s_add_u32 s32, s32, 1")
    A("s_cmp_lt_u32 s32, 64")
    A("s_cbranch_scc1 attn_max_loop")
    A(f"v_mov_b32 v{S0}, v7")
    A("s_nop 1")
    A(f"v_permlane32_swap_b32 v7, v{S0}")
    A("s_nop 1")
    A(f"v_max_f32 v7, v7, v{S0}")
    for i in range(16):
        A(f"v_sub_f32 v{C+i}, 0, v7")
    A("s_branch attn_pass")
    A.label("attn_fin")
    A(f"v_rcp_f32 v7, v{O+8}")
    A("s_nop 0")
    for i in range(8):
        A(f"v_mul_f32 v{O+i}, v7, v{O+i}")
    for j in range(4):
        A(f"v_cvt_pk_bf16_f32 v{O+j}, v{O+2*j}, v{O+2*j+1}")
    A("s_lshl_b32 s24, s22, 5")
    A("s_add_u32 s24, s24, s20")
    A("s_lshl_b32 s24, s24, 10")
    A(f"s_add_u32 s24, s24, {OF:#x}")
    A("s_nop 0")
    A(f"buffer_store_dwordx4 v[{O}:{O+3}], v{VL16}, s[4:7], s24 offen")
    stamp(A, 5)
    if STAMP:
        A("s_waitcnt vmcnt(0)")
    stamp(A, 6); stamp_rt(A, 1)
    stamp_flush(A, 2, 8, 7)
    A.label("attn_end")
    A("s_endpgm")
    return [(nm, 104, 0, 96)]


def gen_g2(A, kind):
    KS = 32 if kind == "wo" else 112
    KW = KS // 4
    D = min(KW, 14)
    names = []
    for layer in range(2):
        nm = f"{kind}_l{layer}_kernel"
        names.append(nm)
        kernel_header(A, nm)
        if kind == "wo":
            xin, xout = (0, 1) if layer == 0 else (2, 3)
        else:
            xin, xout = (1, 2) if layer == 0 else (3, None)
        A(f"s_mov_b32 s20, {XF[xin]:#x}")
        A(f"s_mov_b32 s21, {XF[xout] if xout is not None else 0:#x}")
        A(f"s_mov_b32 s19, {ST[xout] if xout is not None else 0:#x}")
        A(f"s_mov_b32 s18, {1 if xout is None else 0}")
        A(f"s_branch {kind}_body")
    A.raw(".p2align 6")
    A.label(f"{kind}_body")
    A("s_cmp_ge_u32 s2, 256")
    A(f"s_cbranch_scc1 {kind}_end")
    stamp(A, 0); stamp_rt(A, 0)
    A("s_load_dwordx2 s[16:17], s[0:1], 64")
    A("s_load_dwordx2 s[12:13], s[0:1], 48")
    VLANE, VN32, VHH, VL16 = 1, 2, 3, 4
    lane_setup(A, VLANE, 3, vn32=VN32, vhh=VHH, vl16=VL16)
    A("s_and_b32 s24, s2, 7")
    A("s_lshr_b32 s25, s2, 3")
    A("s_lshl_b32 s22, s24, 2")
    A("s_lshr_b32 s26, s25, 3")
    A("s_add_u32 s22, s22, s26")
    A("s_and_b32 s23, s25, 7")
    A("s_lshr_b32 s26, s3, 1")
    A("s_and_b32 s27, s3, 1")
    A("s_lshl_b32 s28, s22, 1")
    A("s_lshl_b32 s29, s23, 1")
    A("s_add_u32 s30, s28, s26")
    A("s_xor_b32 s26, s26, 1")
    A("s_add_u32 s31, s28, s26")
    A("s_add_u32 s33, s29, s27")
    A("s_xor_b32 s27, s27, 1")
    A("s_add_u32 s34, s29, s27")
    ASRC = OF if kind == "wo" else HF
    WSRC = WOF if kind == "wo" else W2F
    A(f"s_mul_i32 s35, s3, {KW}")
    for dst, idx, base in ((36, 30, ASRC), (37, 31, ASRC), (38, 33, WSRC), (39, 34, WSRC)):
        A(f"s_mul_i32 s{dst}, s{idx}, {KS}")
        A(f"s_add_u32 s{dst}, s{dst}, s35")
        A(f"s_lshl_b32 s{dst}, s{dst}, 10")
        A(f"s_add_u32 s{dst}, s{dst}, {base:#x}")
    A("s_lshl_b32 s40, s30, 5")
    A("s_lshl_b32 s41, s33, 1")
    A("s_add_u32 s40, s40, s41")
    A("s_lshl_b32 s40, s40, 10")
    A("s_add_u32 s41, s40, s20")
    A("s_waitcnt lgkmcnt(0)")
    make_srd(A, 4, 16, WS_BYTES)
    stamp(A, 1)
    make_srd(A, 8, 12, OUT_BYTES)
    XO = 8
    A(f"buffer_load_dwordx4 v[{XO}:{XO+3}], v{VL16}, s[4:7], s41 offen")
    A(f"buffer_load_dwordx4 v[{XO+4}:{XO+7}], v{VL16}, s[4:7], s41 offen offset:1024")
    def issue(s):
        slot = (s % D) * 16
        o = (s % 4) * 1024
        for k, sreg in enumerate((36, 38, 37, 39)):
            A(f"buffer_load_dwordx4 a[{slot+4*k}:{slot+4*k+3}], v{VL16}, s[4:7], s{sreg} offen offset:{o}")
        if s % 4 == 3:
            for sreg in (36, 37, 38, 39):
                A(f"s_add_u32 s{sreg}, s{sreg}, 4096")
    for s in range(D):
        issue(s)
    ACC = 16
    stamp(A, 2)
    for s in range(KW):
        if s == 1:
            stamp(A, 3)
        issued = min(KW, D + s)
        A(f"s_waitcnt vmcnt({(issued - s - 1) * 4})")
        slot = (s % D) * 16
        XA, WA, XB, WB = (f"a[{slot+4*k}:{slot+4*k+3}]" for k in range(4))
        for u, (w, x) in enumerate(((WA, XA), (WB, XA), (WA, XB), (WB, XB))):
            acc = f"v[{ACC+16*u}:{ACC+16*u+15}]"
            cin = acc if s > 0 else "0"
            A(f"v_mfma_f32_32x32x16_bf16 {acc}, {w}, {x}, {cin}")
        if D + s < KW:
            issue(D + s)
    stamp(A, 4)
    A("s_nop 15")
    A("s_nop 3")
    for u in range(1, 4):
        A(f"s_xor_b32 s42, s3, {u}")
        A(f"s_mul_i32 s42, s42, 12288")
        A(f"s_add_u32 s42, s42, {(u-1)*4096}")
        A(f"v_add_u32 v5, s42, v{VL16}")
        for i in range(4):
            r = ACC + 16 * u + 4 * i
            A(f"ds_write_b128 v5, v[{r}:{r+3}] offset:{i*1024}")
    A("s_mul_i32 s42, s3, 12288")
    A(f"v_add_u32 v5, s42, v{VL16}")
    A("s_waitcnt lgkmcnt(0)")
    A("s_barrier")
    for u in range(1, 4):
        for i in range(4):
            r = ACC + 16 * u + 4 * i
            A(f"ds_read_b128 v[{r}:{r+3}], v5 offset:{(u-1)*4096 + i*1024}")
    for u in range(1, 4):
        A(f"s_waitcnt lgkmcnt({(3-u)*4})")
        for r in range(0, 16, 2):
            A(f"v_pk_add_f32 v[{ACC+r}:{ACC+r+1}], v[{ACC+r}:{ACC+r+1}], v[{ACC+16*u+r}:{ACC+16*u+r+1}]")
    T = ACC + 16
    for j in range(8):
        A(f"v_lshlrev_b32 v{T+2*j}, 16, v{XO+j}")
        A(f"v_and_b32 v{T+2*j+1}, 0xffff0000, v{XO+j}")
    for r in range(0, 16, 2):
        A(f"v_pk_add_f32 v[{ACC+r}:{ACC+r+1}], v[{ACC+r}:{ACC+r+1}], v[{T+r}:{T+r+1}]")
    for j in range(8):
        A(f"v_cvt_pk_bf16_f32 v{XO+j}, v{ACC+2*j}, v{ACC+2*j+1}")
    A("s_cmp_lg_u32 s18, 0")
    A(f"s_cbranch_scc1 {kind}_final")
    A("s_add_u32 s41, s40, s21")
    A("s_nop 0")
    A(f"buffer_store_dwordx4 v[{XO}:{XO+3}], v{VL16}, s[4:7], s41 offen")
    A(f"buffer_store_dwordx4 v[{XO+4}:{XO+7}], v{VL16}, s[4:7], s41 offen offset:1024")
    A("v_mov_b32 v6, 0")
    A("v_mov_b32 v7, 0")
    A(f"v_mov_b32 v5, {ONES:#x}")
    for j in range(8):
        A(f"v_dot2c_f32_bf16 v6, v{XO+j}, v5")
        A(f"v_dot2c_f32_bf16 v7, v{XO+j}, v{XO+j}")
    A("s_nop 4")
    cross_half_add(A, 6, 5)
    cross_half_add(A, 7, 5)
    A(f"v_lshlrev_b32 v5, 7, v{VN32}")
    A("s_lshl_b32 s42, s30, 12")
    A("s_lshl_b32 s43, s33, 3")
    A("s_add_u32 s42, s42, s43")
    A("s_add_u32 s42, s42, s19")
    A("s_nop 0")
    A("buffer_store_dwordx2 v[6:7], v5, s[4:7], s42 offen")
    A(f"s_branch {kind}_done")
    A.label(f"{kind}_final")
    A(f"v_lshlrev_b32 v5, 10, v{VN32}")
    A(f"v_lshl_add_u32 v5, v{VHH}, 3, v5")
    A("s_lshl_b32 s42, s30, 15")
    A("s_lshl_b32 s43, s33, 6")
    A("s_add_u32 s42, s42, s43")
    A("s_nop 0")
    for sp in range(2):
        for q in range(2):
            r = XO + 4 * sp + 2 * q
            A(f"buffer_store_dwordx2 v[{r}:{r+1}], v5, s[8:11], s42 offen offset:{sp*32 + q*16}")
    A.label(f"{kind}_done")
    stamp(A, 5)
    if STAMP:
        A("s_waitcnt vmcnt(0)")
    stamp(A, 6); stamp_rt(A, 1)
    stamp_flush(A, 3 if kind == "wo" else 5, 4, 7)
    A.label(f"{kind}_end")
    A("s_endpgm")
    return [(n, 104 if STAMP else 80, D * 16, 96) for n in names]


def main():
    A = Asm()
    descs = []
    descs.append(gen_prep(A))
    descs += gen_g1(A, "qkv")
    descs += gen_attn(A)
    descs += gen_g2(A, "wo")
    descs += gen_g1(A, "ffn1")
    descs += gen_g2(A, "ffn2")
    launches = [("prep_kernel", 240, 256, 512)]
    for l in range(2):
        launches += [
            (f"qkv_l{l}_kernel", 256, 256, 3 * 32768 + 1536),
            ("attn_kernel", 256, 512, 131072),
            (f"wo_l{l}_kernel", 256, 256, 49152),
            (f"ffn1_l{l}_kernel", 224, 256, 4 * 32768 + 1536),
            (f"ffn2_l{l}_kernel", 256, 256, 49152),
        ]
    ref = open(f"cdna_kernels/{NAME}.s.ref").read().split("\n")
    hdr = [l for l in ref if l.startswith(";") and "@launch" not in l and "Override launch" not in l and "grid=ceil" not in l]
    out = []
    out += hdr
    import os
    nl = int(os.environ.get("NLAUNCH", len(launches)))
    for (k, g, b, lds) in launches[:nl]:
        out.append(f"; @launch kernel={k} grid=({g},1,1) block=({b},1,1) lds={lds}")
    out.append('.amdgcn_target "amdgcn-amd-amdhsa--gfx950"')
    out.append(".text")
    txt = "\n".join(out) + "\n" + A.text()
    txt += '.section .rodata,"a"\n.p2align 6\n'
    for (n, v, a, s) in descs:
        txt += ".p2align 6\n" + kernel_desc(n, v, a, s)
    path = sys.argv[1] if len(sys.argv) > 1 else f"cdna_kernels/{NAME}.s"
    open(path, "w").write(txt)
    print("wrote", path, len(txt), "bytes")


if __name__ == "__main__":
    main()
```
